```python
import torch

def _softmax(x, axis=-1):
    return torch.softmax(x, dim=axis)
def _gelu(x):
    return torch.nn.functional.gelu(x, approximate="tanh")
def _silu(x):
    return torch.nn.functional.silu(x)
def _sigmoid(x):
    return torch.sigmoid(x)
def _layernorm(x, axis=-1, eps=1e-5):
    m = x.mean(dim=axis, keepdim=True)
    v = x.var(dim=axis, keepdim=True, unbiased=False)
    return (x - m) / torch.sqrt(v + eps)
def _scatter_add(tgt, idx, src, axis=0):
    return tgt.clone().index_add_(axis, idx, src)
def _segment_sum(src, seg, n):
    out = torch.zeros((n,) + src.shape[1:], dtype=src.dtype)
    return out.index_add_(0, seg, src)
def _pad(x, pw):
    flat = tuple(v for pair in reversed(pw) for v in pair)
    return torch.nn.functional.pad(x, flat)

kernel_name = 'sequential_preLN__linear_kernel_hedgehog__swiglu_ffn__prompt'

def setup_inputs():

    _w = (lambda a: (lambda t: t.to(torch.bfloat16) if t.is_floating_point() else t)(torch.as_tensor(a)))
    def _A_setup():
        B, S, D, H = 1, 2048, 576, 32
        Dh = D // H
        return {
            "x": _w((lambda *s: torch.randn(*s, dtype=torch.bfloat16) * 0.05)(B, S, D)),
            "wqkv": _w((lambda *s: torch.randn(*s, dtype=torch.bfloat16) * 0.2)(D, 3 * D)),
            "w_phi": _w((lambda *s: torch.randn(*s, dtype=torch.bfloat16) * 0.2)(H, Dh, Dh) * (Dh ** -0.5)),
            "wo": _w((lambda *s: torch.randn(*s, dtype=torch.bfloat16) * 0.05)(D, D)),
        }
    _A_in = _A_setup()

    def _B_setup():
        B, S, D, F = 1, 2048, 576, 4608
        return {
            "x": _w((lambda *s: torch.randn(*s, dtype=torch.bfloat16) * 0.05)(B, S, D)),
            "w_gate": _w((lambda *s: torch.randn(*s, dtype=torch.bfloat16) * 0.05)(D, F)),
            "w_up": _w((lambda *s: torch.randn(*s, dtype=torch.bfloat16) * 0.05)(D, F)),
            "w_down": _w((lambda *s: torch.randn(*s, dtype=torch.bfloat16) * 0.05)(F, D)),
        }
    _B_in = _B_setup()

    return {
        "A_x": _A_in["x"],
        "A_wqkv": _A_in["wqkv"],
        "A_w_phi": _A_in["w_phi"],
        "A_wo": _A_in["wo"],
        "B_x": _B_in["x"],
        "B_w_gate": _B_in["w_gate"],
        "B_w_up": _B_in["w_up"],
        "B_w_down": _B_in["w_down"],
    }

def reference(A_x, A_wqkv, A_w_phi, A_wo, B_x, B_w_gate, B_w_up, B_w_down):
    def _A_ref(x, wqkv, w_phi, wo):
        B, S, D = x.shape
        H = 32; Dh = D // H
        qkv = (lambda x, *d: x.permute(*d))((x @ wqkv).reshape(B, S, 3, H, Dh), 2, 0, 3, 1, 4)
        q, k, v = qkv[0], qkv[1], qkv[2]
        pq = torch.einsum("bhsd,hdf->bhsf", q, w_phi)
        pk = torch.einsum("bhsd,hdf->bhsf", k, w_phi)
        phi_q = torch.concatenate([_softmax(pq, axis=-1), _softmax(-pq, axis=-1)], axis=-1)
        phi_k = torch.concatenate([_softmax(pk, axis=-1), _softmax(-pk, axis=-1)], axis=-1)
        kv = torch.einsum("bhsf,bhsd->bhfd", phi_k, v)
        z  = torch.einsum("bhsf->bhf", phi_k)
        num = torch.einsum("bhqf,bhfd->bhqd", phi_q, kv)
        den = torch.einsum("bhqf,bhf->bhq", phi_q, z)[..., None] + 1e-6
        o = num / den
        return (lambda x, *d: x.permute(*d))(o, 0, 2, 1, 3).reshape(B, S, D) @ wo

    def _B_ref(x, w_gate, w_up, w_down):
        g = _silu(x @ w_gate)
        u = x @ w_up
        return (g * u) @ w_down

    x = A_x
    h = x + _A_ref(_layernorm(x, axis=-1), A_wqkv, A_w_phi, A_wo)
    h2 = h + _B_ref(_layernorm(h, axis=-1), B_w_gate, B_w_up, B_w_down)
    return h2
```

```python
class Asm:
    def __init__(self):
        self.lines = []
    def __call__(self, s):
        for ln in s.strip("\n").split("\n"):
            self.lines.append("    " + ln.strip())
    def label(self, l):
        self.lines.append(l + ":")
    def raw(self, s):
        self.lines.append(s)
    def c(self, s):
        self.lines.append("    ; " + s)
    def nop(self, n):
        while n > 0:
            k = min(n, 16)
            self.lines.append("    s_nop %d" % (k - 1))
            n -= k
    def text(self):
        return "\n".join(self.lines) + "\n"

def vr(b, n=1):
    return "v%d" % b if n == 1 else "v[%d:%d]" % (b, b + n - 1)
def ar(b, n=1):
    return "a%d" % b if n == 1 else "a[%d:%d]" % (b, b + n - 1)
def sr(b, n=1):
    return "s%d" % b if n == 1 else "s[%d:%d]" % (b, b + n - 1)

def srd(a, d, base, off, nbytes):
    if off:
        a("s_add_u32 s%d, s%d, 0x%x" % (d, base, off))
        a("s_addc_u32 s%d, s%d, 0" % (d + 1, base + 1))
    else:
        a("s_mov_b32 s%d, s%d" % (d, base))
        a("s_mov_b32 s%d, s%d" % (d + 1, base + 1))
    a("s_mov_b32 s%d, 0x%x" % (d + 2, nbytes))
    a("s_mov_b32 s%d, 0x00020000" % (d + 3))

def kernel_begin(a, name):
    a.raw(".text")
    a.raw(".globl %s" % name)
    a.raw(".p2align 8")
    a.raw(".type %s,@function" % name)
    a.label(name)

def kernel_desc(a, name, vgpr, sgpr, accum):
    a.raw('.section .rodata,"a"')
    a.raw(".p2align 6")
    a.raw(".amdhsa_kernel %s" % name)
    a.raw("  .amdhsa_next_free_vgpr %d" % vgpr)
    a.raw("  .amdhsa_next_free_sgpr %d" % sgpr)
    a.raw("  .amdhsa_accum_offset %d" % accum)
    a.raw("  .amdhsa_group_segment_fixed_size 0")
    a.raw("  .amdhsa_kernarg_size 88")
    a.raw("  .amdhsa_user_sgpr_count 2")
    a.raw("  .amdhsa_user_sgpr_kernarg_segment_ptr 1")
    a.raw("  .amdhsa_system_sgpr_workgroup_id_x 1")
    a.raw(".end_amdhsa_kernel")

import os
PROF = bool(int(os.environ.get("PROF", "0")))
WS_PROF = 0x4000000
TIMER = "s_memrealtime" if os.environ.get("PROF_RT") else "s_memtime"
class Prof:
    def __init__(self, a, on=None):
        self.a = a; self.on = PROF if on is None else on
    def start(self):
        if not self.on: return
        a = self.a
        a("%s s[70:71]" % TIMER)
        a("s_memrealtime s[74:75]")
        for i in range(16): a("s_mov_b32 s%d, 0" % (80 + i))
        a("s_waitcnt lgkmcnt(0)")
        a("s_mov_b32 s73, s70")
    def mark(self, idx):
        if not self.on: return
        a = self.a
        a("%s s[70:71]" % TIMER)
        a("s_waitcnt lgkmcnt(0)")
        a("s_sub_u32 s72, s70, s73")
        a("s_add_u32 s%d, s%d, s72" % (80 + idx, 80 + idx))
        a("s_mov_b32 s73, s70")
    def finish(self, ws_lo, wave_sgpr, kidx, nwaves=4):
        if not self.on: return
        a = self.a
        a("s_memrealtime s[76:77]")
        a("s_waitcnt lgkmcnt(0)")
        a("s_sub_u32 s95, s76, s74")
        a("s_mov_b32 s94, s74")
        srd(a, 96, ws_lo, WS_PROF + kidx * 0x100000, 0x100000)
        a("s_mul_i32 s72, s2, %d" % (nwaves * 64))
        a("s_lshl_b32 s73, s%d, 6" % wave_sgpr)
        a("s_add_u32 s72, s72, s73")
        a("v_mov_b32 v0, 0")
        a("s_mov_b64 exec, 1")
        for i in range(16):
            a("v_mov_b32 v1, s%d" % (80 + i))
            a("buffer_store_dword v1, v0, s[96:99], s72 offen offset:%d" % (4 * i))
            a("s_nop 0")

def code_touch(a, name, end_label, vtmp, vdst, s0, nshare=32, idx_expr=None):
    a("s_getpc_b64 s[%d:%d]" % (s0, s0 + 1))
    a.label("L_%s_pc" % name)
    a("s_mov_b32 s%d, %s-L_%s_pc" % (s0 + 2, end_label, name))
    a("s_mov_b32 s%d, 0x00020000" % (s0 + 3))
    a("s_lshr_b32 s%d, s2, 3" % (s0 + 4))
    a("s_and_b32 s%d, s%d, %d" % (s0 + 4, s0 + 4, nshare - 1))
    a("v_lshlrev_b32 v%d, %d, v0" % (vtmp, 7 + (nshare.bit_length() - 1)))
    a("s_lshl_b32 s%d, s%d, 7" % (s0 + 4, s0 + 4))
    a("buffer_load_dword v%d, v%d, s[%d:%d], s%d offen" % (vdst, vtmp, s0, s0 + 3, s0 + 4))
```

```python
import sys, os
sys.path.insert(0, os.path.dirname(os.path.abspath(__file__)))
from asmlib import *
import importlib

HEADER = """; Kernarg layout for this problem (88 bytes, ptrs only, base s[0:1]):
"""

def build(kernels, out):
    a = Asm()
    launches = []
    for k in kernels:
        mod = importlib.import_module(k)
        launches.append(getattr(mod, "gen_" + k)(a))
    if len(launches) == 1 and os.environ.get("PLAIN", "1") == "1" and "prompt_kernel" in launches[0]:
        import re
        launches = [re.sub(r"kernel=\S+ ", "", launches[0])]
    a.raw(".text")
    a.label("L_all_end")
    txt = HEADER + "\n".join(launches) + "\n" + '.amdgcn_target "amdgcn-amd-amdhsa--gfx950"\n' + a.text()
    open(out, "w").write(txt)

if __name__ == "__main__":
    ks = sys.argv[1].split(",")
    out = sys.argv[2] if len(sys.argv) > 2 else "k.s"
    build(ks, out)
```

```python
class Asm:
    def __init__(self):
        self.lines = []
    def __call__(self, s):
        for ln in s.strip("\n").split("\n"):
            self.lines.append("    " + ln.strip())
    def label(self, l):
        self.lines.append(l + ":")
    def raw(self, s):
        self.lines.append(s)
    def c(self, s):
        self.lines.append("    ; " + s)
    def nop(self, n):
        while n > 0:
            k = min(n, 16)
            self.lines.append("    s_nop %d" % (k - 1))
            n -= k
    def text(self):
        return "\n".join(self.lines) + "\n"

def vr(b, n=1):
    return "v%d" % b if n == 1 else "v[%d:%d]" % (b, b + n - 1)
def ar(b, n=1):
    return "a%d" % b if n == 1 else "a[%d:%d]" % (b, b + n - 1)
def sr(b, n=1):
    return "s%d" % b if n == 1 else "s[%d:%d]" % (b, b + n - 1)

def srd(a, d, base, off, nbytes):
    if off:
        a("s_add_u32 s%d, s%d, 0x%x" % (d, base, off))
        a("s_addc_u32 s%d, s%d, 0" % (d + 1, base + 1))
    else:
        a("s_mov_b32 s%d, s%d" % (d, base))
        a("s_mov_b32 s%d, s%d" % (d + 1, base + 1))
    a("s_mov_b32 s%d, 0x%x" % (d + 2, nbytes))
    a("s_mov_b32 s%d, 0x00020000" % (d + 3))

def kernel_begin(a, name):
    a.raw(".text")
    a.raw(".globl %s" % name)
    a.raw(".p2align 8")
    a.raw(".type %s,@function" % name)
    a.label(name)

def kernel_desc(a, name, vgpr, sgpr, accum):
    a.raw('.section .rodata,"a"')
    a.raw(".p2align 6")
    a.raw(".amdhsa_kernel %s" % name)
    a.raw("  .amdhsa_next_free_vgpr %d" % vgpr)
    a.raw("  .amdhsa_next_free_sgpr %d" % sgpr)
    a.raw("  .amdhsa_accum_offset %d" % accum)
    a.raw("  .amdhsa_group_segment_fixed_size 0")
    a.raw("  .amdhsa_kernarg_size 88")
    a.raw("  .amdhsa_user_sgpr_count 2")
    a.raw("  .amdhsa_user_sgpr_kernarg_segment_ptr 1")
    a.raw("  .amdhsa_system_sgpr_workgroup_id_x 1")
    a.raw(".end_amdhsa_kernel")

import os
PROF = bool(int(os.environ.get("PROF", "0")))
WS_PROF = 0x4000000
TIMER = "s_memrealtime" if os.environ.get("PROF_RT") else "s_memtime"
class Prof:
    def __init__(self, a, on=None):
        self.a = a; self.on = PROF if on is None else on
    def start(self):
        if not self.on: return
        a = self.a
        a("%s s[70:71]" % TIMER)
        a("s_memrealtime s[74:75]")
        for i in range(16): a("s_mov_b32 s%d, 0" % (80 + i))
        a("s_waitcnt lgkmcnt(0)")
        a("s_mov_b32 s73, s70")
    def mark(self, idx):
        if not self.on: return
        a = self.a
        a("%s s[70:71]" % TIMER)
        a("s_waitcnt lgkmcnt(0)")
        a("s_sub_u32 s72, s70, s73")
        a("s_add_u32 s%d, s%d, s72" % (80 + idx, 80 + idx))
        a("s_mov_b32 s73, s70")
    def finish(self, ws_lo, wave_sgpr, kidx, nwaves=4):
        if not self.on: return
        a = self.a
        a("s_memrealtime s[76:77]")
        a("s_waitcnt lgkmcnt(0)")
        a("s_sub_u32 s95, s76, s74")
        a("s_mov_b32 s94, s74")
        if os.environ.get("PROF_DBG"):
            a("s_load_dwordx2 s[76:77], s[0:1], 72")
            a("s_waitcnt lgkmcnt(0)")
            srd(a, 96, 76, 0, 64)
        else:
            srd(a, 96, ws_lo, WS_PROF + kidx * 0x100000, 0x100000)
        a("s_mul_i32 s72, s2, %d" % (nwaves * 64))
        a("s_lshl_b32 s73, s%d, 6" % wave_sgpr)
        a("s_add_u32 s72, s72, s73")
        a("v_mov_b32 v0, 0")
        a("s_mov_b64 exec, 1")
        for i in range(16):
            a("v_mov_b32 v1, s%d" % (80 + i))
            a("buffer_store_dword v1, v0, s[96:99], s72 offen offset:%d" % (4 * i))
            a("s_nop 0")

def code_touch(a, name, end_label, vtmp, vdst, s0, nshare=32, idx_expr=None):
    a("s_getpc_b64 s[%d:%d]" % (s0, s0 + 1))
    a.label("L_%s_pc" % name)
    a("s_mov_b32 s%d, %s-L_%s_pc" % (s0 + 2, end_label, name))
    a("s_mov_b32 s%d, 0x00020000" % (s0 + 3))
    a("s_lshr_b32 s%d, s2, 3" % (s0 + 4))
    a("s_and_b32 s%d, s%d, %d" % (s0 + 4, s0 + 4, nshare - 1))
    a("v_lshlrev_b32 v%d, %d, v0" % (vtmp, 7 + (nshare.bit_length() - 1)))
    a("s_lshl_b32 s%d, s%d, 7" % (s0 + 4, s0 + 4))
    a("buffer_load_dword v%d, v%d, s[%d:%d], s%d offen" % (vdst, vtmp, s0, s0 + 3, s0 + 4))
```

```python
class Asm:
    def __init__(self):
        self.lines = []
    def __call__(self, s):
        for ln in s.strip("\n").split("\n"):
            self.lines.append("    " + ln.strip())
    def label(self, l):
        self.lines.append(l + ":")
    def raw(self, s):
        self.lines.append(s)
    def c(self, s):
        self.lines.append("    ; " + s)
    def nop(self, n):
        while n > 0:
            k = min(n, 16)
            self.lines.append("    s_nop %d" % (k - 1))
            n -= k
    def text(self):
        return "\n".join(self.lines) + "\n"

def vr(b, n=1):
    return "v%d" % b if n == 1 else "v[%d:%d]" % (b, b + n - 1)
def ar(b, n=1):
    return "a%d" % b if n == 1 else "a[%d:%d]" % (b, b + n - 1)
def sr(b, n=1):
    return "s%d" % b if n == 1 else "s[%d:%d]" % (b, b + n - 1)

def srd(a, d, base, off, nbytes):
    if off:
        a("s_add_u32 s%d, s%d, 0x%x" % (d, base, off))
        a("s_addc_u32 s%d, s%d, 0" % (d + 1, base + 1))
    else:
        a("s_mov_b32 s%d, s%d" % (d, base))
        a("s_mov_b32 s%d, s%d" % (d + 1, base + 1))
    a("s_mov_b32 s%d, 0x%x" % (d + 2, nbytes))
    a("s_mov_b32 s%d, 0x00020000" % (d + 3))

def kernel_begin(a, name):
    a.raw(".text")
    a.raw(".globl %s" % name)
    a.raw(".p2align 8")
    a.raw(".type %s,@function" % name)
    a.label(name)

def kernel_desc(a, name, vgpr, sgpr, accum):
    a.raw('.section .rodata,"a"')
    a.raw(".p2align 6")
    a.raw(".amdhsa_kernel %s" % name)
    a.raw("  .amdhsa_next_free_vgpr %d" % vgpr)
    a.raw("  .amdhsa_next_free_sgpr %d" % sgpr)
    a.raw("  .amdhsa_accum_offset %d" % accum)
    a.raw("  .amdhsa_group_segment_fixed_size 0")
    a.raw("  .amdhsa_kernarg_size 88")
    a.raw("  .amdhsa_user_sgpr_count 2")
    a.raw("  .amdhsa_user_sgpr_kernarg_segment_ptr 1")
    a.raw("  .amdhsa_system_sgpr_workgroup_id_x 1")
    a.raw(".end_amdhsa_kernel")

import os
PROF = bool(int(os.environ.get("PROF", "0")))
WS_PROF = 0x4000000
TIMER = "s_memrealtime" if os.environ.get("PROF_RT") else "s_memtime"
ABSMAP = {("a", 1): 0, ("a", 3): 1, ("a", 8): 2, ("a", 9): 3, ("a", 10): 4, ("a", 11): 5, ("a", 12): 6, ("a", 13): 7, ("a", 7): 8,
          ("4", 0): 9, ("4", 5): 10, ("4", 13): 11, ("4", 3): 12, ("4", 2): 13}
class Prof:
    def __init__(self, a, on=None, part="a"):
        self.a = a; self.on = PROF if on is None else on; self.part = part
    def start(self):
        if not self.on: return
        if os.environ.get("PROF_ABS") and self.part != "a": return
        a = self.a
        a("%s s[70:71]" % TIMER)
        a("s_memrealtime s[74:75]")
        for i in range(16): a("s_mov_b32 s%d, 0" % (80 + i))
        a("s_waitcnt lgkmcnt(0)")
        a("s_mov_b32 s73, s70")
    def mark(self, idx):
        if not self.on: return
        a = self.a
        if os.environ.get("PROF_ABS"):
            idx = ABSMAP.get((self.part, idx))
            if idx is None: return
            a("s_memrealtime s[70:71]")
            a("s_waitcnt lgkmcnt(0)")
            a("s_mov_b32 s%d, s70" % (80 + idx))
            return
        a("%s s[70:71]" % TIMER)
        a("s_waitcnt lgkmcnt(0)")
        a("s_sub_u32 s72, s70, s73")
        a("s_add_u32 s%d, s%d, s72" % (80 + idx, 80 + idx))
        a("s_mov_b32 s73, s70")
    def finish(self, ws_lo, wave_sgpr, kidx, nwaves=4):
        if not self.on: return
        a = self.a
        a("s_memrealtime s[76:77]")
        a("s_waitcnt lgkmcnt(0)")
        a("s_sub_u32 s95, s76, s74")
        a("s_mov_b32 s94, s74")
        if os.environ.get("PROF_DBG"):
            a("s_load_dwordx2 s[76:77], s[0:1], 72")
            a("s_waitcnt lgkmcnt(0)")
            srd(a, 96, 76, 0, 64)
        else:
            srd(a, 96, ws_lo, WS_PROF + kidx * 0x100000, 0x100000)
        a("s_mul_i32 s72, s2, %d" % (nwaves * 64))
        a("s_lshl_b32 s73, s%d, 6" % wave_sgpr)
        a("s_add_u32 s72, s72, s73")
        a("v_mov_b32 v0, 0")
        a("s_mov_b64 exec, 1")
        for i in range(16):
            a("v_mov_b32 v1, s%d" % (80 + i))
            a("buffer_store_dword v1, v0, s[96:99], s72 offen offset:%d" % (4 * i))
            a("s_nop 0")

def code_touch(a, name, end_label, vtmp, vdst, s0, nshare=32, idx_expr=None):
    a("s_getpc_b64 s[%d:%d]" % (s0, s0 + 1))
    a.label("L_%s_pc" % name)
    a("s_mov_b32 s%d, %s-L_%s_pc" % (s0 + 2, end_label, name))
    a("s_mov_b32 s%d, 0x00020000" % (s0 + 3))
    a("s_lshr_b32 s%d, s2, 3" % (s0 + 4))
    a("s_and_b32 s%d, s%d, %d" % (s0 + 4, s0 + 4, nshare - 1))
    a("v_lshlrev_b32 v%d, %d, v0" % (vtmp, 7 + (nshare.bit_length() - 1)))
    a("s_lshl_b32 s%d, s%d, 7" % (s0 + 4, s0 + 4))
    a("buffer_load_dword v%d, v%d, s[%d:%d], s%d offen" % (vdst, vtmp, s0, s0 + 3, s0 + 4))

def poll_flags(a, label, srd_lo, soff, mask, vnonce, vaddr, vtmp, scnt, wave_sgpr, off=0, mode=None):
    mode = mode or os.environ.get("POLL", "all")
    ld = lambda r: "buffer_load_dword v%d, v%d, s[%d:%d], s%d offen offset:%d sc0 sc1" % (r, vaddr, srd_lo, srd_lo + 3, soff, off)
    if mode == "all":
        a("s_mov_b32 s%d, 0x8000" % scnt)
        a("s_mov_b64 exec, 0x%x" % mask)
        a.label(label)
        a(ld(vtmp))
        a("s_waitcnt vmcnt(0)")
        a("v_cmp_ne_u32 vcc, v%d, v%d" % (vtmp, vnonce))
        a("s_sub_u32 s%d, s%d, 1" % (scnt, scnt))
        a("s_cbranch_scc1 %sd" % label)
        a("s_cbranch_vccz %sd" % label)
        a("s_sleep 1")
        a("s_branch " + label)
        a.label(label + "d")
        a("s_mov_b64 exec, -1")
        return
    a("s_cmp_lg_u32 s%d, 0" % wave_sgpr)
    a("s_cbranch_scc1 %sw" % label)
    a("s_mov_b32 s%d, 0x8000" % scnt)
    a("s_mov_b64 exec, 0x%x" % mask)
    SL = int(os.environ.get("POLL_SLEEP", "4"))
    for i in range(3):
        a(ld(vtmp + i))
        a("s_sleep %d" % SL)
    a.label(label)
    for i in range(4):
        a(ld(vtmp + (i + 3) % 4))
        a("s_waitcnt vmcnt(3)")
        a("v_cmp_ne_u32 vcc, v%d, v%d" % (vtmp + i, vnonce))
        a("s_nop 1")
        a("s_cbranch_vccz %sd" % label)
        a("s_sleep %d" % SL)
    a("s_sub_u32 s%d, s%d, 1" % (scnt, scnt))
    a("s_cbranch_scc0 " + label)
    a.label(label + "d")
    a("s_mov_b64 exec, -1")
    a.label(label + "w")
    a("s_barrier")


def poll_issue(a, srd_lo, soff, mask, vaddr, vtmp, off=0):
    a("s_mov_b64 exec, 0x%x" % mask)
    a("buffer_load_dword v%d, v%d, s[%d:%d], s%d offen offset:%d sc0 sc1" % (vtmp, vaddr, srd_lo, srd_lo + 3, soff, off))
    a("s_mov_b64 exec, -1")

def poll_finish(a, label, srd_lo, soff, mask, vnonce, vaddr, vtmp, scnt, nafter, off=0):
    a("s_mov_b32 s%d, 0x8000" % scnt)
    a("s_mov_b64 exec, 0x%x" % mask)
    a("s_waitcnt vmcnt(%d)" % nafter)
    a("s_branch %sc" % label)
    a.label(label)
    a("buffer_load_dword v%d, v%d, s[%d:%d], s%d offen offset:%d sc0 sc1" % (vtmp, vaddr, srd_lo, srd_lo + 3, soff, off))
    a("s_waitcnt vmcnt(0)")
    a.label(label + "c")
    a("v_cmp_ne_u32 vcc, v%d, v%d" % (vtmp, vnonce))
    a("s_sub_u32 s%d, s%d, 1" % (scnt, scnt))
    a("s_cbranch_scc1 %sd" % label)
    a("s_cbranch_vccnz %s" % label)
    a.label(label + "d")
    a("s_mov_b64 exec, -1")
```
